```python
import torch

def _softmax(x, axis=-1):
    return torch.softmax(x, dim=axis)
def _gelu(x):
    return torch.nn.functional.gelu(x, approximate="tanh")
def _silu(x):
    return torch.nn.functional.silu(x)
def _sigmoid(x):
    return torch.sigmoid(x)
def _layernorm(x, axis=-1, eps=1e-5):
    m = x.mean(dim=axis, keepdim=True)
    v = x.var(dim=axis, keepdim=True, unbiased=False)
    return (x - m) / torch.sqrt(v + eps)
def _scatter_add(tgt, idx, src, axis=0):
    return tgt.clone().index_add_(axis, idx, src)
def _segment_sum(src, seg, n):
    out = torch.zeros((n,) + src.shape[1:], dtype=src.dtype)
    return out.index_add_(0, seg, src)
def _pad(x, pw):
    flat = tuple(v for pair in reversed(pw) for v in pair)
    return torch.nn.functional.pad(x, flat)

kernel_name = 'interleave_layers__ssm_conv_h3__glu_gated_glu__prompt'

def setup_inputs():

    _w = (lambda a: (lambda t: t.to(torch.bfloat16) if t.is_floating_point() else t)(torch.as_tensor(a)))
    def _A_setup():
        B, S, D = 1, 2048, 640
        ks = 4
        return {
            "q": _w((lambda *s: torch.randn(*s, dtype=torch.bfloat16) * 0.05)(B, S, D)),
            "k": _w((lambda *s: torch.randn(*s, dtype=torch.bfloat16) * 0.4)(B, S, D)),
            "v": _w((lambda *s: torch.randn(*s, dtype=torch.bfloat16) * 0.4)(B, S, D)),
            "shift_k": _w((lambda *s: torch.randn(*s, dtype=torch.bfloat16) * 0.4)(D, ks) * 0.5),
            "ssm_k": _w((lambda *s: torch.randn(*s, dtype=torch.bfloat16) * 0.4)(D, S) * (1.0 / S ** 0.5)),
            "ssm_D": _w((lambda *s: torch.randn(*s, dtype=torch.bfloat16) * 0.4)(D)),
        }
    _A_in = _A_setup()

    def _B_setup():
        B, S, D, F = 1, 2048, 640, 1728
        return {
            "x": _w((lambda *s: torch.randn(*s, dtype=torch.bfloat16) * 0.05)(B, S, D)),
            "w_gate": _w((lambda *s: torch.randn(*s, dtype=torch.bfloat16) * 0.05)(D, F)),
            "w_up": _w((lambda *s: torch.randn(*s, dtype=torch.bfloat16) * 0.05)(D, F)),
            "w_down": _w((lambda *s: torch.randn(*s, dtype=torch.bfloat16) * 0.05)(F, D)),
        }
    _B_in = _B_setup()

    return {
        "A_q": _A_in["q"],
        "A_k": _A_in["k"],
        "A_v": _A_in["v"],
        "A_shift_k": _A_in["shift_k"],
        "A_ssm_k": _A_in["ssm_k"],
        "A_ssm_D": _A_in["ssm_D"],
        "B_x": _B_in["x"],
        "B_w_gate": _B_in["w_gate"],
        "B_w_up": _B_in["w_up"],
        "B_w_down": _B_in["w_down"],
    }

def reference(A_q, A_k, A_v, A_shift_k, A_ssm_k, A_ssm_D, B_x, B_w_gate, B_w_up, B_w_down):
    def _A_ref(q, k, v, shift_k, ssm_k, ssm_D):
        B, S, D = q.shape
        ks = shift_k.shape[-1]
        k_pad = _pad(k, ((0, 0), (ks - 1, 0), (0, 0)))
        k_shift = torch.zeros_like(k)
        for t in range(ks):
            k_shift = k_shift + k_pad[:, t:t + S, :] * shift_k[:, ks - 1 - t][None, None, :]
        kv = k_shift * v
        L = 2 * S
        kv_pad = _pad(kv, ((0, 0), (0, S), (0, 0)))
        kf_pad = _pad(ssm_k, ((0, 0), (0, S)))
        kv_f = (lambda x, axes=(-2,-1): torch.fft.rfft2(x.float(), dim=axes))(kv_pad[:, None, :, :], axes=(1, 2))
        kf_f = (lambda x, axes=(-2,-1): torch.fft.rfft2(x.float(), dim=axes))(kf_pad[:, None, :], axes=(1, 2))
        kf_f = (lambda x, *d: x.permute(*d))(kf_f, 1, 2, 0)
        y_f = kv_f * kf_f[None, :, :, :]
        y = (lambda x, s, axes=(-2,-1): torch.fft.irfft2(x, s=s, dim=axes).to(torch.bfloat16))(y_f, (1, L), axes=(1, 2))[:, 0, :S, :]
        y = y + kv * ssm_D[None, None, :]
        return q * y

    def _B_ref(x, w_gate, w_up, w_down):
        g = torch.einsum("bsd,df->bsf", x, w_gate)
        u = torch.einsum("bsd,df->bsf", x, w_up)
        h = _sigmoid(g) * u
        return torch.einsum("bsf,fd->bsd", h, w_down)

    x = A_q
    x = x + _A_ref(_layernorm(x, axis=-1), A_k, A_v, A_shift_k, A_ssm_k, A_ssm_D)
    x = x + _B_ref(_layernorm(x, axis=-1), B_w_gate, B_w_up, B_w_down)
    x = x + _A_ref(_layernorm(x, axis=-1), A_k, A_v, A_shift_k, A_ssm_k, A_ssm_D)
    x = x + _B_ref(_layernorm(x, axis=-1), B_w_gate, B_w_up, B_w_down)
    return x
```

```python
class K:
    def __init__(s, name):
        s.name = name; s.L = []; s.uid = 0
    def __call__(s, *lines):
        for l in lines:
            s.L.append("    " + l)
    def label(s, l): s.L.append(l + ":")
    def new(s, p="L"):
        s.uid += 1; return f"{p}_{s.name}_{s.uid}"
    def text(s): return "\n".join(s.L)

def srd(k, sreg, ptr_lo, nbytes, add=0):
    if add:
        k(f"s_add_u32 s{sreg}, s{ptr_lo}, {add}", f"s_addc_u32 s{sreg+1}, s{ptr_lo+1}, 0")
    else:
        k(f"s_mov_b32 s{sreg}, s{ptr_lo}", f"s_mov_b32 s{sreg+1}, s{ptr_lo+1}")
    k(f"s_mov_b32 s{sreg+2}, {nbytes}", f"s_mov_b32 s{sreg+3}, 0x00020000")

def wrap(name, body, vgpr, sgpr=96, accum=None):
    accum = accum or ((vgpr + 3)//4*4)
    return f""".globl {name}
.p2align 8
.type {name},@function
{name}:
{body}
    s_endpgm
""", f""".amdhsa_kernel {name}
  .amdhsa_next_free_vgpr {vgpr}
  .amdhsa_next_free_sgpr {sgpr}
  .amdhsa_accum_offset {accum}
  .amdhsa_group_segment_fixed_size 0
  .amdhsa_kernarg_size 104
  .amdhsa_user_sgpr_count 2
  .amdhsa_user_sgpr_kernarg_segment_ptr 1
  .amdhsa_system_sgpr_workgroup_id_x 1
.end_amdhsa_kernel
"""
S, D, F = 2048, 640, 1728
WS_Y = 0
WS_X1 = WS_Y + S*D*2
WS_XN = WS_X1 + S*D*2
WS_X2 = WS_XN + S*D*2
WS_H = WS_X2 + S*D*2
```

```python
from common import *
from ln import rnd2
WS_KV = WS_H + S*F*2
def gen_kvt(name):
    k = K(name)
    k("s_cmp_ge_u32 s2, 320", "s_cbranch_scc1 KVT_END")
    k("s_load_dwordx4 s[4:7], s[0:1], 8", "s_load_dwordx2 s[8:9], s[0:1], 24", "s_load_dwordx2 s[14:15], s[0:1], 96",
      "s_and_b32 s60, s2, 31", "s_lshr_b32 s61, s2, 5", "s_waitcnt lgkmcnt(0)")
    srd(k, 16, 4, S*D*2); srd(k, 20, 6, S*D*2); srd(k, 24, 8, D*4*2); srd(k, 56, 14, S*D*2, WS_KV)
    k("v_lshrrev_b32 v1, 4, v0", "v_and_b32 v2, 15, v0",
      "s_lshl_b32 s62, s60, 6", "v_lshl_add_u32 v3, v1, 2, s62", "s_movk_i32 s63, 1280", "v_mul_lo_u32 v3, v3, s63",
      "s_lshl_b32 s62, s61, 7", "v_add_u32 v3, s62, v3", "v_lshl_add_u32 v3, v2, 3, v3")
    for rr in range(7):
        k(f"v_add_u32 v4, {(rr-3)*1280 & 0xffffffff}, v3", f"buffer_load_dwordx2 v[{10+2*rr}:{11+2*rr}], v4, s[16:19], 0 offen")
    for r in range(4):
        k(f"v_add_u32 v4, {r*1280}, v3", f"buffer_load_dwordx2 v[{24+2*r}:{25+2*r}], v4, s[20:23], 0 offen")
    k("s_lshl_b32 s62, s61, 9", "v_lshlrev_b32 v4, 5, v2", "v_add_u32 v4, s62, v4",
      "buffer_load_dwordx4 v[32:35], v4, s[24:27], 0 offen", "buffer_load_dwordx4 v[36:39], v4, s[24:27], 0 offen offset:16", "s_waitcnt vmcnt(0)")
    k("v_and_b32 v5, 1, v1", "v_xor_b32 v5, 1, v5", "v_lshlrev_b32 v5, 3, v5", "v_lshrrev_b32 v6, 1, v1", "v_lshl_add_u32 v5, v6, 4, v5",
      "v_mul_u32_u24 v6, 544, v2", "v_add_u32 v5, v5, v6")
    KF = 40; VF = 47; W = 51
    for c in range(4):
        op = (lambda d, s: f"v_lshlrev_b32 v{d}, 16, v{s}") if c % 2 == 0 else (lambda d, s: f"v_and_b32 v{d}, 0xffff0000, v{s}")
        for rr in range(7): k(op(KF+rr, 10+2*rr+c//2))
        for r in range(4): k(op(VF+r, 24+2*r+c//2))
        k(f"v_lshlrev_b32 v{W}, 16, v{32+2*c}", f"v_and_b32 v{W+1}, 0xffff0000, v{32+2*c}", f"v_lshlrev_b32 v{W+2}, 16, v{33+2*c}", f"v_and_b32 v{W+3}, 0xffff0000, v{33+2*c}")
        for r in range(0, 4, 2):
            a, b = 60+r, 61+r
            k(f"v_mul_f32 v{a}, v{W+3}, v{KF+r}", f"v_mul_f32 v{b}, v{W+3}, v{KF+r+1}")
            rnd2(k, a, b, 7)
            for t in range(1, 4):
                k(f"v_mul_f32 v8, v{W+3-t}, v{KF+r+t}", f"v_mul_f32 v9, v{W+3-t}, v{KF+r+1+t}")
                rnd2(k, 8, 9, 7)
                k(f"v_add_f32 v{a}, v{a}, v8", f"v_add_f32 v{b}, v{b}, v9")
                rnd2(k, a, b, 7)
            k(f"v_mul_f32 v{a}, v{a}, v{VF+r}", f"v_mul_f32 v{b}, v{b}, v{VF+r+1}")
        k("v_cvt_pk_bf16_f32 v64, v63, v62", "v_cvt_pk_bf16_f32 v65, v61, v60", f"ds_write_b64 v5, v[64:65] offset:{c*136}")
    k("s_waitcnt lgkmcnt(0)", "s_barrier")
    k("v_lshrrev_b32 v1, 3, v0", "v_and_b32 v2, 7, v0", "v_mul_u32_u24 v5, 136, v1", "v_lshl_add_u32 v5, v2, 4, v5",
      "s_lshl_b32 s62, s61, 6", "v_add_u32 v3, s62, v1", "v_lshlrev_b32 v3, 12, v3", "s_lshl_b32 s62, s60, 7", "v_add_u32 v3, s62, v3", "v_lshl_add_u32 v3, v2, 4, v3")
    for q in range(2):
        k(f"ds_read_b64 v[8:9], v5 offset:{q*32*136}", f"ds_read_b64 v[10:11], v5 offset:{q*32*136+8}", "s_waitcnt lgkmcnt(0)",
          f"s_mov_b32 s62, {q*32*4096}", "buffer_store_dwordx4 v[8:11], v3, s[56:59], s62 offen", "s_nop 1")
    k.label("KVT_END")
    return wrap(name, k.text(), 72)
```

```python
from common import *

def wave_sum(k, v, tmp):
    k("s_nop 1")
    k(f"v_add_f32_dpp v{v}, v{v}, v{v} quad_perm:[1,0,3,2] row_mask:0xf bank_mask:0xf", "s_nop 1")
    k(f"v_add_f32_dpp v{v}, v{v}, v{v} quad_perm:[2,3,0,1] row_mask:0xf bank_mask:0xf", "s_nop 1")
    k(f"v_add_f32_dpp v{v}, v{v}, v{v} row_half_mirror row_mask:0xf bank_mask:0xf", "s_nop 1")
    k(f"v_add_f32_dpp v{v}, v{v}, v{v} row_mirror row_mask:0xf bank_mask:0xf", "s_nop 1")
    k(f"v_readlane_b32 s40, v{v}, 0", f"v_readlane_b32 s41, v{v}, 16",
      f"v_readlane_b32 s42, v{v}, 32", f"v_readlane_b32 s43, v{v}, 48", "s_nop 1")
    k(f"v_mov_b32 v{v}, s40", f"v_add_f32 v{v}, s41, v{v}", f"v_add_f32 v{v}, s42, v{v}", f"v_add_f32 v{v}, s43, v{v}")

def rnd1(k, d, s):
    k(f"v_cvt_pk_bf16_f32 v{d}, v{s}, v{s}", f"v_lshlrev_b32 v{d}, 16, v{d}")

def rnd2(k, a, b, p):
    k(f"v_cvt_pk_bf16_f32 v{p}, v{a}, v{b}", f"v_lshlrev_b32 v{a}, 16, v{p}", f"v_and_b32 v{b}, 0xffff0000, v{p}")

def layernorm(k, X, OUT):
    k(f"v_add_f32 v50, v{X}, v{X+1}")
    for i in range(2, 10): k(f"v_add_f32 v50, v{X+i}, v50")
    wave_sum(k, 50, 51)
    k("v_mul_f32 v50, 0x3acccccd, v50")
    k("v_mov_b32 v51, 0")
    for i in range(10):
        k(f"v_sub_f32 v52, v{X+i}, v50", "v_fmac_f32 v51, v52, v52")
    wave_sum(k, 51, 52)
    k("v_mul_f32 v51, 0x3acccccd, v51")
    rnd1(k, 51, 51)
    k("v_add_f32 v51, 0x3727c5ac, v51")
    rnd1(k, 51, 51)
    k("v_sqrt_f32 v51, v51", "s_nop 0")
    rnd1(k, 51, 51)
    k("v_rcp_f32 v51, v51")
    rnd1(k, 50, 50)
    for i in range(0, 10, 2):
        k(f"v_sub_f32 v{OUT+i}, v{X+i}, v50", f"v_sub_f32 v{OUT+i+1}, v{X+i+1}, v50")
        rnd2(k, OUT+i, OUT+i+1, 52)
        k(f"v_mul_f32 v{OUT+i}, v{OUT+i}, v51", f"v_mul_f32 v{OUT+i+1}, v{OUT+i+1}, v51")
        rnd2(k, OUT+i, OUT+i+1, 52)

def gen_ln(name, first):
    k = K(name)
    k("s_cmp_ge_u32 s2, 128", "s_cbranch_scc1 LN_END_" + name)
    k("s_load_dwordx2 s[4:5], s[0:1], 0", "s_load_dwordx2 s[6:7], s[0:1], 96", "s_waitcnt lgkmcnt(0)")
    if first: srd(k, 8, 4, S*D*2)
    else:     srd(k, 8, 6, S*D*2, WS_X2)
    srd(k, 12, 6, S*D*2, WS_Y)
    srd(k, 16, 6, S*D*2, WS_X1)
    srd(k, 20, 6, S*D*2, WS_XN)
    k("v_lshlrev_b32 v1, 12, v0", "s_lshl_b32 s3, s2, 5", "v_add_u32 v1, s3, v1", "v_lshlrev_b32 v2, 1, v0")
    for q in range(3):
        k(f"s_mov_b32 s24, {q*256*4096}", f"buffer_load_dwordx4 v[{10+8*q}:{13+8*q}], v1, s[12:15], s24 offen", f"buffer_load_dwordx4 v[{14+8*q}:{17+8*q}], v1, s[12:15], s24 offen offset:16")
    k("s_waitcnt vmcnt(0)")
    k("v_cmp_gt_u32 vcc, 128, v0", "s_mov_b64 s[28:29], exec")
    for q in range(3):
        if q == 2: k("s_and_b64 exec, exec, vcc")
        for i in range(8):
            k(f"ds_write_b16 v2, v{10+8*q+i} offset:{q*512 + 2*i*1288}", f"ds_write_b16_d16_hi v2, v{10+8*q+i} offset:{q*512 + (2*i+1)*1288}")
    k("s_mov_b64 exec, s[28:29]", "s_waitcnt lgkmcnt(0)", "s_barrier")
    k("v_lshrrev_b32 v3, 6, v0", "v_and_b32 v2, 63, v0", "v_lshlrev_b32 v3, 2, v3")
    k("s_lshl_b32 s3, s2, 4", "v_add_u32 v1, s3, v3", "s_movk_i32 s24, 1280", "v_mul_lo_u32 v1, v1, s24", "v_lshl_add_u32 v1, v2, 2, v1")
    k("s_movk_i32 s24, 1288", "v_mul_lo_u32 v3, v3, s24", "v_lshl_add_u32 v3, v2, 2, v3")
    for rr in range(4):
        for q in range(5):
            k(f"buffer_load_dword v{10+q}, v1, s[8:11], 0 offen offset:{256*q}")
        for q in range(5):
            k(f"ds_read_b32 v{15+q}, v3 offset:{256*q + 1288*rr}")
        k("s_waitcnt vmcnt(0) lgkmcnt(0)")
        for q in range(5):
            k(f"v_lshlrev_b32 v{20+2*q}, 16, v{10+q}", f"v_and_b32 v{21+2*q}, 0xffff0000, v{10+q}")
            k(f"v_lshlrev_b32 v{30+2*q}, 16, v{15+q}", f"v_and_b32 v{31+2*q}, 0xffff0000, v{15+q}")
        layernorm(k, 20, 40)
        for i in range(0, 10, 2):
            k(f"v_mul_f32 v{40+i}, v{40+i}, v{30+i}", f"v_mul_f32 v{41+i}, v{41+i}, v{31+i}")
            rnd2(k, 40+i, 41+i, 52)
            k(f"v_add_f32 v{20+i}, v{20+i}, v{40+i}", f"v_add_f32 v{21+i}, v{21+i}, v{41+i}")
            k(f"v_cvt_pk_bf16_f32 v{10+i//2}, v{20+i}, v{21+i}")
            k(f"v_lshlrev_b32 v{20+i}, 16, v{10+i//2}", f"v_and_b32 v{21+i}, 0xffff0000, v{10+i//2}")
        for q in range(5):
            k(f"buffer_store_dword v{10+q}, v1, s[16:19], 0 offen offset:{256*q}")
        layernorm(k, 20, 40)
        for q in range(5):
            k(f"v_cvt_pk_bf16_f32 v{60+q}, v{40+2*q}, v{41+2*q}")
        for q in range(5):
            k(f"buffer_store_dword v{60+q}, v1, s[20:23], 0 offen offset:{256*q}")
        k("v_add_u32 v1, 1280, v1")
    k.label("LN_END_" + name)
    return wrap(name, k.text(), 72)
```

```python
import sys; sys.path.insert(0, "gen")
from common import *; from ln import gen_ln; from conv import gen_conv, CONV_LDS; from gemm import gen_gemm, gemm_lds
from kvt import gen_kvt
ks = [gen_kvt('kvt_kernel'), gen_conv("conv_kernel"), gen_ln("lna_kernel", True), gen_ln("lnb_kernel", False),
      gen_gemm("g1_kernel", "g1"), gen_gemm("g2a_kernel", "g2a"), gen_gemm("g2b_kernel", "g2b")]
hdr = f"""; generated by gen/build.py
; @launch kernel=kvt_kernel grid=(320,1,1) block=(256,1,1) lds=8704
; @launch kernel=conv_kernel grid=(160,1,1) block=(256,1,1) lds={CONV_LDS}
; @launch kernel=lna_kernel grid=(128,1,1) block=(1024,1,1) lds=20608
; @launch kernel=g1_kernel grid=(432,1,1) block=(256,1,1) lds={gemm_lds(2)}
; @launch kernel=g2a_kernel grid=(160,1,1) block=(256,1,1) lds={gemm_lds(1)}
; @launch kernel=lnb_kernel grid=(128,1,1) block=(1024,1,1) lds=20608
; @launch kernel=g1_kernel grid=(432,1,1) block=(256,1,1) lds={gemm_lds(2)}
; @launch kernel=g2b_kernel grid=(160,1,1) block=(256,1,1) lds={gemm_lds(1)}
.amdgcn_target "amdgcn-amd-amdhsa--gfx950"
.text
"""
out = hdr + "".join(a for a, _ in ks) + '.section .rodata,"a"\n.p2align 6\n' + "".join(".p2align 6\n" + b for _, b in ks)
open("interleave_layers__ssm_conv_h3__glu_gated_glu__prompt.s", "w").write(out)
```

```python
from common import *

def wave_sum(k, v, tmp):
    k("s_nop 1")
    k(f"v_add_f32_dpp v{v}, v{v}, v{v} quad_perm:[1,0,3,2] row_mask:0xf bank_mask:0xf", "s_nop 1")
    k(f"v_add_f32_dpp v{v}, v{v}, v{v} quad_perm:[2,3,0,1] row_mask:0xf bank_mask:0xf", "s_nop 1")
    k(f"v_add_f32_dpp v{v}, v{v}, v{v} row_half_mirror row_mask:0xf bank_mask:0xf", "s_nop 1")
    k(f"v_add_f32_dpp v{v}, v{v}, v{v} row_mirror row_mask:0xf bank_mask:0xf", "s_nop 1")
    k(f"v_readlane_b32 s40, v{v}, 0", f"v_readlane_b32 s41, v{v}, 16",
      f"v_readlane_b32 s42, v{v}, 32", f"v_readlane_b32 s43, v{v}, 48", "s_nop 1")
    k(f"v_mov_b32 v{v}, s40", f"v_add_f32 v{v}, s41, v{v}", f"v_add_f32 v{v}, s42, v{v}", f"v_add_f32 v{v}, s43, v{v}")

def rnd1(k, d, s):
    k(f"v_cvt_pk_bf16_f32 v{d}, v{s}, v{s}", f"v_lshlrev_b32 v{d}, 16, v{d}")

def rnd2(k, a, b, p):
    k(f"v_cvt_pk_bf16_f32 v{p}, v{a}, v{b}", f"v_lshlrev_b32 v{a}, 16, v{p}", f"v_and_b32 v{b}, 0xffff0000, v{p}")

def layernorm(k, X, OUT):
    k(f"v_add_f32 v50, v{X}, v{X+1}")
    for i in range(2, 10): k(f"v_add_f32 v50, v{X+i}, v50")
    wave_sum(k, 50, 51)
    k("v_mul_f32 v50, 0x3acccccd, v50")
    k("v_mov_b32 v51, 0")
    for i in range(10):
        k(f"v_sub_f32 v52, v{X+i}, v50", "v_fmac_f32 v51, v52, v52")
    wave_sum(k, 51, 52)
    k("v_mul_f32 v51, 0x3acccccd, v51")
    rnd1(k, 51, 51)
    k("v_add_f32 v51, 0x3727c5ac, v51")
    rnd1(k, 51, 51)
    k("v_sqrt_f32 v51, v51", "s_nop 0")
    rnd1(k, 51, 51)
    k("v_rcp_f32 v51, v51")
    rnd1(k, 50, 50)
    for i in range(0, 10, 2):
        k(f"v_sub_f32 v{OUT+i}, v{X+i}, v50", f"v_sub_f32 v{OUT+i+1}, v{X+i+1}, v50")
        rnd2(k, OUT+i, OUT+i+1, 52)
        k(f"v_mul_f32 v{OUT+i}, v{OUT+i}, v51", f"v_mul_f32 v{OUT+i+1}, v{OUT+i+1}, v51")
        rnd2(k, OUT+i, OUT+i+1, 52)

def gen_ln(name, first):
    k = K(name)
    k("s_cmp_ge_u32 s2, 128", "s_cbranch_scc1 LN_END_" + name)
    k("s_load_dwordx2 s[4:5], s[0:1], 0", "s_load_dwordx2 s[6:7], s[0:1], 96", "s_waitcnt lgkmcnt(0)")
    if first: srd(k, 8, 4, S*D*2)
    else:     srd(k, 8, 6, S*D*2, WS_X2)
    srd(k, 12, 6, S*D*2, WS_Y)
    srd(k, 16, 6, S*D*2, WS_X1)
    srd(k, 20, 6, S*D*2, WS_XN)
    k("v_lshlrev_b32 v1, 12, v0", "s_lshl_b32 s3, s2, 5", "v_add_u32 v1, s3, v1", "v_lshlrev_b32 v2, 1, v0")
    for q in range(1):
        k(f"s_mov_b32 s24, {q*256*4096}", f"buffer_load_dwordx4 v[{10+8*q}:{13+8*q}], v1, s[12:15], s24 offen", f"buffer_load_dwordx4 v[{14+8*q}:{17+8*q}], v1, s[12:15], s24 offen offset:16")
    k("s_waitcnt vmcnt(0)")
    k("v_cmp_gt_u32 vcc, 640, v0", "s_mov_b64 s[28:29], exec")
    for q in range(1):
        if q == 0: k("s_and_b64 exec, exec, vcc")
        for i in range(8):
            k(f"ds_write_b16 v2, v{10+8*q+i} offset:{q*512 + 2*i*1288}", f"ds_write_b16_d16_hi v2, v{10+8*q+i} offset:{q*512 + (2*i+1)*1288}")
    k("s_mov_b64 exec, s[28:29]", "s_waitcnt lgkmcnt(0)", "s_barrier")
    k("v_lshrrev_b32 v3, 6, v0", "v_and_b32 v2, 63, v0", "s_nop 0")
    k("s_lshl_b32 s3, s2, 4", "v_add_u32 v1, s3, v3", "s_movk_i32 s24, 1280", "v_mul_lo_u32 v1, v1, s24", "v_lshl_add_u32 v1, v2, 2, v1")
    k("s_movk_i32 s24, 1288", "v_mul_lo_u32 v3, v3, s24", "v_lshl_add_u32 v3, v2, 2, v3")
    for rr in range(1):
        for q in range(5):
            k(f"buffer_load_dword v{10+q}, v1, s[8:11], 0 offen offset:{256*q}")
        for q in range(5):
            k(f"ds_read_b32 v{15+q}, v3 offset:{256*q + 1288*rr}")
        k("s_waitcnt vmcnt(0) lgkmcnt(0)")
        for q in range(5):
            k(f"v_lshlrev_b32 v{20+2*q}, 16, v{10+q}", f"v_and_b32 v{21+2*q}, 0xffff0000, v{10+q}")
            k(f"v_lshlrev_b32 v{30+2*q}, 16, v{15+q}", f"v_and_b32 v{31+2*q}, 0xffff0000, v{15+q}")
        layernorm(k, 20, 40)
        for i in range(0, 10, 2):
            k(f"v_mul_f32 v{40+i}, v{40+i}, v{30+i}", f"v_mul_f32 v{41+i}, v{41+i}, v{31+i}")
            rnd2(k, 40+i, 41+i, 52)
            k(f"v_add_f32 v{20+i}, v{20+i}, v{40+i}", f"v_add_f32 v{21+i}, v{21+i}, v{41+i}")
            k(f"v_cvt_pk_bf16_f32 v{10+i//2}, v{20+i}, v{21+i}")
            k(f"v_lshlrev_b32 v{20+i}, 16, v{10+i//2}", f"v_and_b32 v{21+i}, 0xffff0000, v{10+i//2}")
        for q in range(5):
            k(f"buffer_store_dword v{10+q}, v1, s[16:19], 0 offen offset:{256*q}")
        layernorm(k, 20, 40)
        for q in range(5):
            k(f"v_cvt_pk_bf16_f32 v{60+q}, v{40+2*q}, v{41+2*q}")
        for q in range(5):
            k(f"buffer_store_dword v{60+q}, v1, s[20:23], 0 offen offset:{256*q}")
        k("v_add_u32 v1, 1280, v1")
    k.label("LN_END_" + name)
    return wrap(name, k.text(), 72)
```
